```python
import torch

def _softmax(x, axis=-1):
    return torch.softmax(x, dim=axis)
def _gelu(x):
    return torch.nn.functional.gelu(x, approximate="tanh")
def _silu(x):
    return torch.nn.functional.silu(x)
def _sigmoid(x):
    return torch.sigmoid(x)
def _layernorm(x, axis=-1, eps=1e-5):
    m = x.mean(dim=axis, keepdim=True)
    v = x.var(dim=axis, keepdim=True, unbiased=False)
    return (x - m) / torch.sqrt(v + eps)
def _scatter_add(tgt, idx, src, axis=0):
    return tgt.clone().index_add_(axis, idx, src)
def _segment_sum(src, seg, n):
    out = torch.zeros((n,) + src.shape[1:], dtype=src.dtype)
    return out.index_add_(0, seg, src)
def _pad(x, pw):
    flat = tuple(v for pair in reversed(pw) for v in pair)
    return torch.nn.functional.pad(x, flat)

kernel_name = 'standalone__linear_kernel_rfa__prompt'

def setup_inputs():

    _w = (lambda a: (lambda t: t.to(torch.bfloat16) if t.is_floating_point() else t)(torch.as_tensor(a)))
    B, H, Sq, Sk, D, M = 1, 32, 2048, 2048, 192, 64
    return {
        "q": _w((lambda *s: torch.randn(*s, dtype=torch.bfloat16) * 0.1)(B, H, Sq, D)),
        "k": _w((lambda *s: torch.randn(*s, dtype=torch.bfloat16) * 1.6)(B, H, Sk, D)),
        "v": _w((lambda *s: torch.randn(*s, dtype=torch.bfloat16) * 1.6)(B, H, Sk, D)),
        "omega": _w((lambda *s: torch.randn(*s, dtype=torch.bfloat16) * 1.6)(M, D)),
    }

def reference(q, k, v, omega):
    d = q.shape[-1]
    m = omega.shape[0]
    scale = float(d) ** -0.25
    qs = q * scale
    ks = k * scale
    q_proj = torch.einsum("bhsd,md->bhsm", qs, omega)
    k_proj = torch.einsum("bhsd,md->bhsm", ks, omega)
    q_sq = 0.5 * torch.einsum("bhsd,bhsd->bhs", qs, qs)[..., None]
    k_sq = 0.5 * torch.einsum("bhsd,bhsd->bhs", ks, ks)[..., None]
    inv_sqrt_m = float(m) ** -0.5
    phi_q = torch.exp(q_proj - q_sq) * inv_sqrt_m + 1e-6
    phi_k = torch.exp(k_proj - k_sq) * inv_sqrt_m + 1e-6
    kv = torch.einsum("bhsm,bhsd->bhmd", phi_k, v)
    z  = torch.einsum("bhsm->bhm", phi_k)
    num = torch.einsum("bhqm,bhmd->bhqd", phi_q, kv)
    den = torch.einsum("bhqm,bhm->bhq", phi_q, z)[..., None] + 1e-6
    return num / den
```

```python
import struct, sys, math

FUSED = int(sys.argv[1]) if len(sys.argv) > 1 else 1

def f32bits(x):
    return struct.unpack('<I', struct.pack('<f', x))[0]

class Err(Exception):
    pass

class Gen:
    def __init__(self):
        self.out = []
        self.hist = []
        self.pend_vm = []
        self.pend_lg = []
        self.opt_stack = []
        self.opt_ids = 0
        self.nlabel = 0

    def raw(self, text):
        self.out.append(text)

    def _req(self, p, c):
        r = 0
        if p['kind'] == 'valu' and c['kind'] == 'mfma':
            if p['vw'] & (c['vr'] | c['srcC']): r = max(r, 2)
        if p['kind'] == 'mfma':
            D = p['vw']
            if c['kind'] == 'mfma':
                if c['vr'] & D: r = max(r, 12 if p['passes'] == 8 else 8)
                same_chain = (c['srcC'] == D and p['shape'] == c['shape'])
                if c['srcC'] & D and not same_chain: r = max(r, 10 if p['passes'] == 8 else 6)
                if c['vw'] & D and not same_chain: r = max(r, 12 if p['passes'] == 8 else 8)
            elif c['kind'] in ('valu', 'lds_wr', 'vmem_st', 'lds_rd', 'vmem_ld', 'dma'):
                if (c['vr'] | c['vw']) & D: r = max(r, 12 if p['passes'] == 8 else 8)
            if c['kind'] == 'valu' and c['vw'] & p['srcC']:
                r = max(r, 7 if p['passes'] == 8 else 3)
        if p['kind'] == 'valu' and p['trans'] and c['kind'] == 'valu' and not c['trans']:
            if c['vr'] & p['vw']: r = max(r, 1)
        if p['kind'] == 'valu' and p.get('dot'):
            if (c['vr'] | c['vw']) & p['vw']:
                if c['kind'] == 'valu' and c.get('dot') and c['vw'] == p['vw']:
                    pass
                else:
                    r = max(r, 3)
        if p['kind'] == 'valu' and c.get('permlane'):
            if p['vw'] & (c['vr'] | c['vw']): r = max(r, 2)
        if p['sgpr_w_valu']:
            if c['kind'] == 'valu' and c['sgpr_r'] & p['sgpr_w_valu']: r = max(r, 2)
            if c['kind'] in ('vmem_ld', 'vmem_st', 'dma') and c['sgpr_r'] & p['sgpr_w_valu']: r = max(r, 5)
        if p['kind'] == 'valu' and c.get('readlane') and p['vw'] & c['vr']: r = max(r, 1)
        if p.get('m0w') and c['kind'] == 'dma': r = max(r, 1)
        if p.get('wide_store') and c['vw'] & p['vr']: r = max(r, 2 if c['kind'] == 'valu' else 1)
        if p['kind'] == 'valu' and p.get('writes_exec') and c['kind'] == 'mfma': r = max(r, 4)
        return r

    def _needed(self, c):
        from collections import defaultdict
        active = set(self.opt_stack) | {0}
        counts = defaultdict(int)
        need = 0
        for p in reversed(self.hist):
            r = self._req(p, c)
            if r > 0:
                ids = active | set(p['optset'])
                gap = sum(v for k, v in counts.items() if k in ids)
                if r > gap:
                    need = max(need, r - gap)
            counts[p['opt']] += p['states']
            if sum(v for k, v in counts.items() if k in active) >= 24:
                break
        return need

    def _check_pending(self, c):
        regs = c['vr'] | c['vw']
        for lst in (self.pend_vm, self.pend_lg):
            for e in lst:
                if isinstance(e, set) and e & regs:
                    raise Err("missing waitcnt: regs %s pending; instr: %s" % (sorted(e & regs), c['text']))

    def emit(self, text, kind, vw=(), vr=(), srcC=(), passes=0, shape=None, trans=False, dot=False,
             sgpr_w_valu=(), sgpr_r=(), m0w=False, wide_store=False, permlane=False, readlane=False,
             states=1, nocheck=False, writes_exec=False):
        rec = dict(text=text, kind=kind, vw=set(vw), vr=set(vr), srcC=set(srcC), passes=passes, shape=shape,
                   trans=trans, dot=dot, sgpr_w_valu=set(sgpr_w_valu), sgpr_r=set(sgpr_r), m0w=m0w,
                   wide_store=wide_store, permlane=permlane, readlane=readlane, states=states,
                   opt=(self.opt_stack[-1] if self.opt_stack else 0), optset=tuple(self.opt_stack), writes_exec=writes_exec)
        if kind != 'waitcnt' and not nocheck:
            self._check_pending(rec)
        n = self._needed(rec)
        while n > 0:
            k = min(n, 16)
            self.out.append("    s_nop %d" % (k - 1))
            self.hist.append(dict(text='s_nop', kind='nop', vw=set(), vr=set(), srcC=set(), passes=0, shape=None,
                                  trans=False, dot=False, sgpr_w_valu=set(), sgpr_r=set(), m0w=False,
                                  wide_store=False, permlane=False, readlane=False, states=k,
                                  opt=(self.opt_stack[-1] if self.opt_stack else 0), optset=tuple(self.opt_stack), writes_exec=False))
            n -= k
        self.out.append("    " + text)
        self.hist.append(rec)
        if len(self.hist) > 64:
            self.hist = self.hist[-64:]
        if kind == 'vmem_ld':
            self.pend_vm.append(set(vw))
        elif kind in ('vmem_st', 'dma'):
            self.pend_vm.append('x')
        elif kind == 'lds_rd':
            self.pend_lg.append(set(vw))
        elif kind in ('lds_wr', 'smem'):
            self.pend_lg.append('x')

    def waitcnt(self, vm=None, lg=None):
        t = "s_waitcnt"
        if vm is not None:
            t += " vmcnt(%d)" % vm
            self.pend_vm = self.pend_vm[len(self.pend_vm) - vm:] if vm > 0 else []
        if lg is not None:
            t += " lgkmcnt(%d)" % lg
            self.pend_lg = self.pend_lg[len(self.pend_lg) - lg:] if lg > 0 else []
        self.emit(t, 'waitcnt')

    def label(self, name=None):
        if name is None:
            self.nlabel += 1
            name = "L_%d" % self.nlabel
        self.out.append(name + ":")
        return name

    def begin_opt(self):
        self.opt_ids += 1
        self.opt_stack.append(self.opt_ids)

    def end_opt(self, name):
        self.opt_stack.pop()
        self.out.append(name + ":")

    def valu(self, op, dst, srcs, sgpr_r=(), vr_extra=(), trans=False, writes_vcc=False, reads_vcc=False,
             writes_exec=False):
        text = "%s %s, %s" % (op, dst, ", ".join(srcs))
        vr = set(parse_vregs(", ".join(srcs))) | set(vr_extra)
        vw = set(parse_vregs(dst))
        sr = set(sgpr_r)
        for s in srcs:
            if s.startswith('s') and (s[1:].isdigit() or s.startswith('s[')):
                sr.add(s)
        sw = set()
        if writes_vcc: sw.add('vcc')
        if reads_vcc: sr.add('vcc')
        self.emit(text, 'valu', vw=vw, vr=vr, sgpr_r=sr, sgpr_w_valu=sw, trans=trans, writes_exec=writes_exec)

    def readfirstlane(self, sdst, vsrc):
        self.emit("v_readfirstlane_b32 %s, %s" % (sdst, vsrc), 'valu', vr=parse_vregs(vsrc),
                  sgpr_w_valu={sdst}, readlane=True)

    def salu(self, text, m0w=False):
        self.emit(text, 'salu', m0w=m0w)

    def mfma(self, shape, D, A, B):
        passes = 8 if shape == '32x32x16' else 4
        text = "v_mfma_f32_%s_bf16 %s, %s, %s, %s" % (shape, D, A, B, D)
        self.emit(text, 'mfma', vw=parse_vregs(D), vr=parse_vregs(A) + parse_vregs(B), srcC=parse_vregs(D),
                  passes=passes, shape=shape)

    def buf_ld(self, dst, voff, srd, soff, imm=0, flags="", nregs=None):
        text = "buffer_load_dword%s %s, %s, %s, %s offen offset:%d %s" % (
            ("x%d" % nregs) if nregs and nregs > 1 else "", dst, voff, srd, soff, imm, flags)
        self.emit(text.rstrip(), 'vmem_ld', vw=parse_vregs(dst), vr=parse_vregs(voff), sgpr_r={srd, soff})

    def buf_ld_lds(self, voff, srd, soff, imm=0, flags=""):
        text = "buffer_load_dwordx4 %s, %s, %s offen offset:%d %s lds" % (voff, srd, soff, imm, flags)
        self.emit(text.replace("  ", " "), 'dma', vr=parse_vregs(voff), sgpr_r={srd, soff})

    def buf_st(self, data, voff, srd, soff, imm=0, flags=""):
        n = len(parse_vregs(data))
        text = "buffer_store_dword%s %s, %s, %s, %s offen offset:%d %s" % (
            ("x%d" % n) if n > 1 else "", data, voff, srd, soff, imm, flags)
        self.emit(text.rstrip(), 'vmem_st', vr=parse_vregs(data) + parse_vregs(voff), sgpr_r={srd, soff},
                  wide_store=(n >= 3))

    def ds_rd(self, op, dst, addr, imm=0):
        text = "%s %s, %s offset:%d" % (op, dst, addr, imm)
        self.emit(text, 'lds_rd', vw=parse_vregs(dst), vr=parse_vregs(addr))

    def ds_wr(self, op, addr, data, imm=0):
        text = "%s %s, %s offset:%d" % (op, addr, data, imm)
        self.emit(text, 'lds_wr', vr=parse_vregs(addr) + parse_vregs(data))

    def permlane32(self, a, b):
        self.emit("v_permlane32_swap_b32 %s, %s" % (a, b), 'valu', vw=parse_vregs(a) + parse_vregs(b),
                  vr=parse_vregs(a) + parse_vregs(b), permlane=True)

    def barrier(self):
        if any(isinstance(e, set) for e in self.pend_lg) or any(e == 'x' and False for e in self.pend_vm):
            pass
        if any(e == 'x' for e in self.pend_lg):
            raise Err("barrier with LDS writes outstanding")
        self.emit("s_barrier", 'other')

    def text(self):
        return "\n".join(self.out) + "\n"

def parse_vregs(s):
    import re
    out = []
    for m in re.finditer(r'\bv\[(\d+):(\d+)\]|\bv(\d+)\b', s):
        if m.group(3) is not None:
            out.append(int(m.group(3)))
        else:
            out.extend(range(int(m.group(1)), int(m.group(2)) + 1))
    return out

NW = 8
HEADS, SEQ, D, M = 32, 2048, 192, 64
ROWB = D * 2
QKV_BYTES = HEADS * SEQ * ROWB
REC = 48 * 1024
ZBASE = HEADS * 8 * REC
WS_BYTES = 268435456

OM = 0
V0 = 24576
PH0 = 122880
PHSTRIDE = 136
LDS_A = PH0 + 256 * PHSTRIDE
FLG = LDS_A
LDS_TOTAL = 157760
KVF = 24576
ZB = KVF + 24 * 1024
LDS_K2 = ZB + 256

vLane, vR32, vB32, vI16, vG4, vRR, vCC = 0, 1, 2, 3, 4, 5, 6
vKoff, vVsE, vVsO, vPw, vPa = 7, 8, 9, 10, 11
vVa = 12
vSt, vL16, vZrd, vZero = 18, 19, 20, 21
vT = list(range(22, 32))
vKT = 32
vQT = 80
vACC = 128
vW = 160
vPHQ = 224
vX = list(range(240, 256))

sQ, sK, sV, sOMs, sOUT, sDBG, sWS = "s[20:23]", "s[24:27]", "s[28:31]", "s[32:35]", "s[36:39]", "s[40:43]", "s[44:47]"
sWave, sHead, sChunk, sCur = "s48", "s49", "s50", "s51"
sScale, sLog2e, sEps, sEighth = "s52", "s53", "s54", "s55"
sQbase, sKVbase = "s56", "s57"
sT = ["s%d" % i for i in range(60, 70)]
sPollCnt, sPollVal, sMode, sQdone, sIter, sRecSo, sZSo, sFH, sCG = ["s%d" % i for i in range(70, 79)]
sT2 = ["s%d" % i for i in range(80, 90)]
NEXT_SGPR = 90

SCALE = f32bits(192.0 ** -0.25)
LOG2E = f32bits(1.4426950408889634)
EPS = f32bits(1e-6)
EIGHTH = f32bits(0.125)

def vr(n): return "v%d" % n
def vrng(a, n): return "v[%d:%d]" % (a, a + n - 1) if n > 1 else "v%d" % a

def prologue(g, kernel):
    g.salu("s_cmp_ge_u32 s2, 256")
    g.raw("    s_cbranch_scc1 L_exit")
    g.salu("s_load_dwordx8 s[4:11], s[0:1], 0")
    g.emit("s_load_dwordx4 s[12:15], s[0:1], 32", 'smem')
    g.emit("s_load_dwordx2 s[16:17], s[0:1], 48", 'smem')
    g.valu("v_lshrrev_b32", vr(vT[0]), ["6", "v0"])
    g.readfirstlane(sWave, vr(vT[0]))
    g.valu("v_and_b32", vr(vLane), ["63", "v0"])
    g.salu("s_and_b32 %s, s2, 7" % sT[0])
    g.salu("s_lshr_b32 %s, s2, 3" % sT[1])
    g.salu("s_and_b32 %s, %s, 3" % (sT[1], sT[1]))
    g.salu("s_lshr_b32 %s, s2, 5" % sChunk)
    g.salu("s_lshl_b32 %s, %s, 2" % (sT[0], sT[0]))
    g.salu("s_add_u32 %s, %s, %s" % (sHead, sT[0], sT[1]))
    g.salu("s_mov_b32 %s, %s" % (sCur, sChunk))
    g.salu("s_mov_b32 %s, 0" % sMode)
    g.salu("s_mov_b32 %s, 0" % sQdone)
    g.salu("s_mov_b32 %s, 0" % sIter)
    g.salu("s_mov_b32 %s, 0x%x" % (sScale, SCALE))
    g.salu("s_mov_b32 %s, 0x%x" % (sLog2e, LOG2E))
    g.salu("s_mov_b32 %s, 0x%x" % (sEps, EPS))
    g.salu("s_mov_b32 %s, 0x%x" % (sEighth, EIGHTH))
    g.valu("v_and_b32", vr(vR32), ["31", vr(vLane)])
    g.valu("v_lshrrev_b32", vr(vB32), ["5", vr(vLane)])
    g.valu("v_and_b32", vr(vI16), ["15", vr(vLane)])
    g.valu("v_lshrrev_b32", vr(vG4), ["4", vr(vLane)])
    g.valu("v_lshrrev_b32", vr(vRR), ["2", vr(vI16)])
    g.valu("v_and_b32", vr(vCC), ["3", vr(vI16)])
    g.valu("v_mov_b32", vr(vZero), ["0"])
    g.valu("v_lshlrev_b32", vr(vL16), ["4", vr(vLane)])
    g.salu("s_and_b32 %s, %s, 1" % (sFH, sWave))
    g.salu("s_lshr_b32 %s, %s, 1" % (sCG, sWave))
    g.waitcnt(lg=0)
    def srd(base, lo, hi, nbytes):
        g.salu("s_mov_b32 %s, %s" % (base[0], lo))
        g.salu("s_and_b32 %s, %s, 0xffff" % (base[1], hi))
        g.salu("s_mov_b32 %s, 0x%x" % (base[2], nbytes))
        g.salu("s_mov_b32 %s, 0x00020000" % base[3])
    def sq(r): return ["s%d" % i for i in range(r, r + 4)]
    srd(sq(20), "s4", "s5", QKV_BYTES)
    srd(sq(24), "s6", "s7", QKV_BYTES)
    srd(sq(28), "s8", "s9", QKV_BYTES)
    srd(sq(32), "s10", "s11", M * D * 2)
    srd(sq(36), "s12", "s13", QKV_BYTES)
    srd(sq(40), "s14", "s15", 256)
    srd(sq(44), "s16", "s17", WS_BYTES)
    g.salu("s_mul_i32 %s, %s, %d" % (sT[0], sHead, SEQ * ROWB))
    g.salu("s_mul_i32 %s, %s, %d" % (sT[1], sChunk, 256 * ROWB))
    g.salu("s_add_u32 %s, %s, %s" % (sQbase, sT[0], sT[1]))
    g.salu("s_mov_b32 %s, %s" % (sKVbase, sQbase))
    g.salu("s_mov_b32 %s, %d" % (sT[2], ROWB))
    g.valu("v_lshlrev_b32", vr(vT[1]), ["5", vr(vB32)])
    g.valu("v_mad_u32_u24", vr(vKoff), [sT[2], vr(vR32), vr(vT[1])])
    t0, t1, t2, t3, t4 = vT[0:5]
    g.valu("v_lshrrev_b32", vr(t0), ["3", vr(vLane)])
    g.valu("v_and_b32", vr(t1), ["7", vr(vLane)])
    g.valu("v_lshrrev_b32", vr(t2), ["1", vr(t1)])
    g.valu("v_and_b32", vr(t1), ["1", vr(t1)])
    g.valu("v_lshrrev_b32", vr(t3), ["1", vr(t0)])
    g.valu("v_and_b32", vr(t3), ["1", vr(t3)])
    g.valu("v_xor_b32", vr(t4), [vr(t2), vr(t3)])
    g.valu("v_lshlrev_b32", vr(t4), ["5", vr(t4)])
    g.valu("v_lshlrev_b32", vr(t1), ["4", vr(t1)])
    g.valu("v_mul_u32_u24", vr(t0), [sT[2], vr(t0)])
    g.valu("v_add3_u32", vr(vVsE), [vr(t0), vr(t1), vr(t4)])
    g.valu("v_xor_b32", vr(t4), ["64", vr(t4)])
    g.valu("v_add3_u32", vr(vVsO), [vr(t0), vr(t1), vr(t4)])
    g.salu("s_mul_i32 %s, %s, %d" % (sT[3], sWave, 32 * PHSTRIDE))
    g.salu("s_add_u32 %s, %s, %d" % (sT[3], sT[3], PH0))
    g.salu("s_mov_b32 %s, %d" % (sT[4], PHSTRIDE))
    g.valu("v_lshlrev_b32", vr(t0), ["3", vr(vB32)])
    g.valu("v_mad_u32_u24", vr(t0), [sT[4], vr(vR32), vr(t0)])
    g.valu("v_add_u32", vr(vPw), [sT[3], vr(t0)])
    g.salu("s_lshl_b32 %s, %s, 6" % (sT[5], sFH))
    g.salu("s_add_u32 %s, %s, %d" % (sT[5], sT[5], PH0))
    g.valu("v_lshl_add_u32", vr(t0), [vr(vG4), "3", vr(vRR)])
    g.valu("v_mul_u32_u24", vr(t0), [sT[4], vr(t0)])
    g.valu("v_lshl_add_u32", vr(t0), [vr(vCC), "3", vr(t0)])
    g.valu("v_add_u32", vr(vPa), [sT[5], vr(t0)])
    g.valu("v_lshlrev_b32", vr(t0), ["7", vr(vRR)])
    g.valu("v_lshl_add_u32", vr(t0), [vr(vCC), "3", vr(t0)])
    g.salu("s_mov_b32 %s, 3072" % sT[6])
    g.valu("v_mad_u32_u24", vr(t0), [sT[6], vr(vG4), vr(t0)])
    g.valu("v_lshrrev_b32", vr(t1), ["1", vr(vRR)])
    g.valu("v_and_b32", vr(t1), ["1", vr(t1)])
    g.valu("v_and_b32", vr(t2), ["1", vr(vG4)])
    g.valu("v_lshl_add_u32", vr(t1), [vr(t2), "1", vr(t1)])
    g.valu("v_lshl_add_u32", vr(t0), [vr(t1), "5", vr(t0)])
    g.valu("v_add_u32", vr(t0), ["%d" % V0, vr(t0)])
    for j in range(3):
        g.salu("s_mul_i32 %s, %s, 3" % (sT[7], sCG))
        g.salu("s_add_u32 %s, %s, %d" % (sT[7], sT[7], j))
        g.salu("s_and_b32 %s, %s, 3" % (sT[8], sT[7]))
        g.salu("s_lshl_b32 %s, %s, 5" % (sT[8], sT[8]))
        g.salu("s_lshr_b32 %s, %s, 2" % (sT[7], sT[7]))
        g.salu("s_lshl_b32 %s, %s, 10" % (sT[7], sT[7]))
        g.valu("v_xor_b32", vr(t1), [sT[8], vr(t0)])
        g.valu("v_add_u32", vr(vVa + 2 * j), [sT[7], vr(t1)])
        g.salu("s_add_u32 %s, %s, 49152" % (sT[7], sT[7]))
        g.valu("v_add_u32", vr(vVa + 2 * j + 1), [sT[7], vr(t1)])
    g.valu("v_lshrrev_b32", vr(t0), ["1", vr(vG4)])
    g.valu("v_lshlrev_b32", vr(t0), ["10", vr(t0)])
    g.valu("v_and_b32", vr(t1), ["1", vr(vG4)])
    g.valu("v_lshl_or_b32", vr(t0), [vr(t1), "9", vr(t0)])
    g.valu("v_lshl_add_u32", vr(vSt), [vr(vI16), "4", vr(t0)])
    g.valu("v_lshlrev_b32", vr(t0), ["3", vr(vB32)])
    g.valu("v_add_u32", vr(vZrd), ["%d" % ZB, vr(t0)])

def issue_omega_dma(g):
    g.salu("s_and_b32 %s, %s, 3" % (sT[0], sWave))
    g.salu("s_lshr_b32 %s, %s, 2" % (sT[1], sWave))
    g.salu("s_mul_i32 %s, %s, 12288" % (sT[1], sT[1]))
    g.salu("s_mul_i32 %s, %s, 3072" % (sT[2], sWave))
    for i in range(3):
        g.salu("s_mul_i32 %s, %s, 3" % (sT[3], sT[0]))
        g.salu("s_add_u32 %s, %s, %d" % (sT[3], sT[3], i))
        g.salu("s_and_b32 %s, %s, 1" % (sT[4], sT[3]))
        g.salu("s_lshl_b32 %s, %s, 4" % (sT[4], sT[4]))
        g.salu("s_lshr_b32 %s, %s, 1" % (sT[3], sT[3]))
        g.salu("s_lshl_b32 %s, %s, 6" % (sT[3], sT[3]))
        g.salu("s_add_u32 %s, %s, %s" % (sT[3], sT[3], sT[4]))
        g.salu("s_add_u32 %s, %s, %s" % (sT[3], sT[3], sT[1]))
        g.salu("s_add_u32 %s, %s, %d" % (sT[4], sT[2], i * 1024))
        g.salu("s_mov_b32 m0, %s" % sT[4], m0w=True)
        g.buf_ld_lds(vr(vKoff), sOMs, sT[3])

def issue_k_loads(g):
    g.salu("s_mul_i32 %s, %s, %d" % (sT[0], sWave, 32 * ROWB))
    g.salu("s_add_u32 %s, %s, %s" % (sT[0], sT[0], sKVbase))
    for up in range(12):
        u, e = up >> 1, up & 1
        g.buf_ld(vrng(vKT + 4 * up, 4), vr(vKoff), sK, sT[0], imm=64 * u + 16 * e, nregs=4)

def issue_v_dma(g):
    g.salu("s_mul_i32 %s, %s, %d" % (sT[0], sWave, 32 * ROWB))
    g.salu("s_add_u32 %s, %s, %s" % (sT[0], sT[0], sKVbase))
    g.salu("s_mul_i32 %s, %s, %d" % (sT[1], sWave, 12 * 1024))
    g.salu("s_add_u32 %s, %s, %d" % (sT[1], sT[1], V0))
    for ip in range(4):
        for C in range(3):
            g.salu("s_add_u32 %s, %s, %d" % (sT[2], sT[0], ip * 3072 + C * 128))
            g.salu("s_add_u32 %s, %s, %d" % (sT[3], sT[1], ip * 3072 + C * 1024))
            g.salu("s_mov_b32 m0, %s" % sT[3], m0w=True)
            g.buf_ld_lds(vr(vVsE if (ip & 1) == 0 else vVsO), sV, sT[2])

def issue_q_loads(g):
    g.salu("s_mul_i32 %s, %s, %d" % (sT[0], sWave, 32 * ROWB))
    g.salu("s_add_u32 %s, %s, %s" % (sT[0], sT[0], sQbase))
    for up in range(12):
        u, e = up >> 1, up & 1
        g.buf_ld(vrng(vQT + 4 * up, 4), vr(vKoff), sQ, sT[0], imm=64 * u + 16 * e, nregs=4)

def phi_block(g, tbase, is_q):
    ring = vW
    def issue_batch(k):
        for up in range(4 * k, 4 * k + 4):
            for fb in range(2):
                r = ring + (k & 1) * 32 + (up - 4 * k) * 8 + fb * 4
                g.ds_rd("ds_read_b128", vrng(r, 4), vr(vL16), imm=OM + (fb * 12 + up) * 1024)
    issue_batch(0)
    issue_batch(1)
    for i in range(32):
        g.valu("v_mov_b32", vr(vACC + i), ["0"])
    vsq = vX[0]
    g.valu("v_mov_b32", vr(vsq), ["0"])
    t = vT
    for k in range(3):
        for up in range(4 * k, 4 * k + 4):
            tr = tbase + 4 * up
            for d in range(4):
                a, b2 = vX[1 + (d & 1) * 2], vX[2 + (d & 1) * 2]
                g.valu("v_lshlrev_b32", vr(a), ["16", vr(tr + d)])
                g.valu("v_and_b32", vr(b2), ["0xffff0000", vr(tr + d)])
                g.valu("v_mul_f32", vr(a), [sScale, vr(a)])
                g.valu("v_mul_f32", vr(b2), [sScale, vr(b2)])
                g.valu("v_cvt_pk_bf16_f32", vr(tr + d), [vr(a), vr(b2)])
            for d in range(4):
                g.valu("v_dot2c_f32_bf16", vr(vsq), [vr(tr + d), vr(tr + d)], vr_extra=[vsq])
                g.hist[-1]['dot'] = True
            if up == 4 * k:
                g.waitcnt(lg=8)
            slot = ring + ((k & 1) * 32) + (up - 4 * k) * 8
            g.mfma('32x32x16', vrng(vACC, 16), vrng(slot, 4), vrng(tr, 4))
            g.mfma('32x32x16', vrng(vACC + 16, 16), vrng(slot + 4, 4), vrng(tr, 4))
        if k == 0:
            issue_batch(2)
    a, b2 = vX[1], vX[2]
    g.valu("v_mov_b32", vr(a), [vr(vsq)])
    g.valu("v_mov_b32", vr(b2), [vr(vsq)])
    g.permlane32(vr(a), vr(b2))
    g.valu("v_add_f32", vr(a), [vr(a), vr(b2)])
    sqh = vX[3]
    g.valu("v_cvt_pk_bf16_f32", vr(sqh), [vr(a), vr(a)])
    g.valu("v_lshlrev_b32", vr(sqh), ["16", vr(sqh)])
    g.valu("v_mul_f32", vr(sqh), ["0.5", vr(sqh)])
    veps = vX[4]
    g.valu("v_mov_b32", vr(veps), [sEps])
    t0, t1, t2 = vX[5], vX[6], vX[7]
    for fb in range(2):
        for a_ in range(4):
            outs = []
            for pair in range(2):
                ra, rb = vACC + 16 * fb + 4 * a_ + 2 * pair, vACC + 16 * fb + 4 * a_ + 2 * pair + 1
                g.valu("v_cvt_pk_bf16_f32", vr(t0), [vr(ra), vr(rb)])
                g.valu("v_lshlrev_b32", vr(t1), ["16", vr(t0)])
                g.valu("v_and_b32", vr(t0), ["0xffff0000", vr(t0)])
                g.valu("v_sub_f32", vr(t1), [vr(t1), vr(sqh)])
                g.valu("v_sub_f32", vr(t0), [vr(t0), vr(sqh)])
                g.valu("v_cvt_pk_bf16_f32", vr(t2), [vr(t1), vr(t0)])
                g.valu("v_lshlrev_b32", vr(t1), ["16", vr(t2)])
                g.valu("v_and_b32", vr(t0), ["0xffff0000", vr(t2)])
                g.valu("v_mul_f32", vr(t1), [sLog2e, vr(t1)])
                g.valu("v_mul_f32", vr(t0), [sLog2e, vr(t0)])
                g.valu("v_exp_f32", vr(t1), [vr(t1)], trans=True)
                g.valu("v_exp_f32", vr(t0), [vr(t0)], trans=True)
                g.valu("v_cvt_pk_bf16_f32", vr(t2), [vr(t1), vr(t0)])
                g.valu("v_lshlrev_b32", vr(t1), ["16", vr(t2)])
                g.valu("v_and_b32", vr(t0), ["0xffff0000", vr(t2)])
                g.valu("v_fma_f32", vr(t1), [vr(t1), sEighth, vr(veps)])
                g.valu("v_fma_f32", vr(t0), [vr(t0), sEighth, vr(veps)])
                if is_q:
                    dst = vPHQ + 8 * fb + 2 * a_ + pair
                else:
                    dst = vT[2 * pair if True else pair]
                g.valu("v_cvt_pk_bf16_f32", vr(dst), [vr(t1), vr(t0)])
                outs.append(dst)
            if not is_q:
                pass
    if not is_q:
        pass


def phi_to_regs(g, tbase, is_q):
    ring = vW
    def issue_batch(k):
        for up in range(4 * k, 4 * k + 4):
            for fb in range(2):
                r = ring + (k & 1) * 32 + (up - 4 * k) * 8 + fb * 4
                g.ds_rd("ds_read_b128", vrng(r, 4), vr(vL16), imm=OM + (fb * 12 + up) * 1024)
    issue_batch(0)
    issue_batch(1)
    for i in range(32):
        g.valu("v_mov_b32", vr(vACC + i), ["0"])
    vsq = vX[15]
    g.valu("v_mov_b32", vr(vsq), ["0"])
    for k in range(3):
        for up in range(4 * k, 4 * k + 4):
            tr = tbase + 4 * up
            for d in range(4):
                a, b2 = vX[0 + (d & 1) * 2], vX[1 + (d & 1) * 2]
                g.valu("v_lshlrev_b32", vr(a), ["16", vr(tr + d)])
                g.valu("v_and_b32", vr(b2), ["0xffff0000", vr(tr + d)])
                g.valu("v_mul_f32", vr(a), [sScale, vr(a)])
                g.valu("v_mul_f32", vr(b2), [sScale, vr(b2)])
                g.valu("v_cvt_pk_bf16_f32", vr(tr + d), [vr(a), vr(b2)])
            for d in range(4):
                g.emit("v_dot2c_f32_bf16 %s, %s, %s" % (vr(vsq), vr(tr + d), vr(tr + d)), 'valu',
                       vw=[vsq], vr=[vsq, tr + d], dot=True)
            if up == 4 * k:
                g.waitcnt(lg=8 if k < 2 else 0)
            slot = ring + ((k & 1) * 32) + (up - 4 * k) * 8
            g.mfma('32x32x16', vrng(vACC, 16), vrng(slot, 4), vrng(tr, 4))
            g.mfma('32x32x16', vrng(vACC + 16, 16), vrng(slot + 4, 4), vrng(tr, 4))
        if k == 0:
            issue_batch(2)
    a, b2 = vX[0], vX[1]
    g.valu("v_mov_b32", vr(a), [vr(vsq)])
    g.valu("v_mov_b32", vr(b2), [vr(vsq)])
    g.permlane32(vr(a), vr(b2))
    g.valu("v_add_f32", vr(a), [vr(a), vr(b2)])
    sqh = vX[14]
    g.valu("v_cvt_pk_bf16_f32", vr(sqh), [vr(a), vr(a)])
    g.valu("v_lshlrev_b32", vr(sqh), ["16", vr(sqh)])
    g.valu("v_mul_f32", vr(sqh), ["0.5", vr(sqh)])
    veps = vX[13]
    g.valu("v_mov_b32", vr(veps), [sEps])
    t0, t1, t2 = vX[0], vX[1], vX[2]
    pk0 = vX[4]
    for fb in range(2):
        for a_ in range(4):
            for pair in range(2):
                ra, rb = vACC + 16 * fb + 4 * a_ + 2 * pair, vACC + 16 * fb + 4 * a_ + 2 * pair + 1
                g.valu("v_cvt_pk_bf16_f32", vr(t0), [vr(ra), vr(rb)])
                g.valu("v_lshlrev_b32", vr(t1), ["16", vr(t0)])
                g.valu("v_and_b32", vr(t0), ["0xffff0000", vr(t0)])
                g.valu("v_sub_f32", vr(t1), [vr(t1), vr(sqh)])
                g.valu("v_sub_f32", vr(t0), [vr(t0), vr(sqh)])
                g.valu("v_cvt_pk_bf16_f32", vr(t2), [vr(t1), vr(t0)])
                g.valu("v_lshlrev_b32", vr(t1), ["16", vr(t2)])
                g.valu("v_and_b32", vr(t0), ["0xffff0000", vr(t2)])
                g.valu("v_mul_f32", vr(t1), [sLog2e, vr(t1)])
                g.valu("v_mul_f32", vr(t0), [sLog2e, vr(t0)])
                g.valu("v_exp_f32", vr(t1), [vr(t1)], trans=True)
                g.valu("v_exp_f32", vr(t0), [vr(t0)], trans=True)
                g.valu("v_cvt_pk_bf16_f32", vr(t2), [vr(t1), vr(t0)])
                g.valu("v_lshlrev_b32", vr(t1), ["16", vr(t2)])
                g.valu("v_and_b32", vr(t0), ["0xffff0000", vr(t2)])
                g.valu("v_fma_f32", vr(t1), [vr(t1), sEighth, vr(veps)])
                g.valu("v_fma_f32", vr(t0), [vr(t0), sEighth, vr(veps)])
                dst = (vPHQ + 8 * fb + 2 * a_ + pair) if is_q else (pk0 + pair)
                g.valu("v_cvt_pk_bf16_f32", vr(dst), [vr(t1), vr(t0)])
            if not is_q:
                g.ds_wr("ds_write_b64", vr(vPw), vrng(pk0, 2), imm=64 * fb + 16 * a_)

def kv_phase(g):
    for i in range(32):
        g.valu("v_mov_b32", vr(vACC + i), ["0"])
    ones = vW + 40
    for i in range(4):
        g.valu("v_mov_b32", vr(ones + i), ["0x3f803f80"])
    PA = vW
    PB = vW + 8
    for kb in range(8):
        half, kk = kb >> 2, kb & 3
        for fi in range(2):
            for e in range(2):
                g.ds_rd("ds_read_b64_tr_b16", vrng(PA + 4 * fi + 2 * e, 2), vr(vPa),
                        imm=kb * 32 * PHSTRIDE + e * 4 * PHSTRIDE + fi * 32)
        for j in range(3):
            for e in range(2):
                g.ds_rd("ds_read_b64_tr_b16", vrng(PB + 4 * j + 2 * e, 2), vr(vVa + 2 * j + half),
                        imm=kk * 12288 + e * 512)
        g.waitcnt(lg=0)
        for fi in range(2):
            for j in range(3):
                g.mfma('16x16x32', vrng(vACC + 4 * (3 * fi + j), 4), vrng(PA + 4 * fi, 4), vrng(PB + 4 * j, 4))
        g.salu("s_cmp_lg_u32 %s, 0" % sCG)
        lab = "L_zskip_%d" % kb
        g.raw("    s_cbranch_scc1 %s" % lab)
        g.begin_opt()
        for fi in range(2):
            g.mfma('16x16x32', vrng(vACC + 24 + 4 * fi, 4), vrng(PA + 4 * fi, 4), vrng(ones, 4))
        g.end_opt(lab)

def partial_stores(g, sc1):
    fl = "sc1" if sc1 else ""
    g.salu("s_lshl_b32 %s, %s, 3" % (sT[0], sHead))
    g.salu("s_add_u32 %s, %s, %s" % (sT[0], sT[0], sCur))
    g.salu("s_mul_i32 %s, %s, %d" % (sRecSo, sT[0], REC))
    g.salu("s_lshl_b32 %s, %s, 8" % (sZSo, sT[0]))
    g.salu("s_add_u32 %s, %s, %d" % (sZSo, sZSo, ZBASE))
    g.salu("s_lshl_b32 %s, %s, 12" % (sT[0], sFH))
    g.salu("s_add_u32 %s, %s, %s" % (sT[0], sT[0], sRecSo))
    for j in range(3):
        g.salu("s_mul_i32 %s, %s, 3" % (sT[1], sCG))
        g.salu("s_add_u32 %s, %s, %d" % (sT[1], sT[1], j))
        g.salu("s_lshr_b32 %s, %s, 1" % (sT[2], sT[1]))
        g.salu("s_lshl_b32 %s, %s, 13" % (sT[2], sT[2]))
        g.salu("s_and_b32 %s, %s, 1" % (sT[1], sT[1]))
        g.salu("s_lshl_b32 %s, %s, 8" % (sT[1], sT[1]))
        g.salu("s_add_u32 %s, %s, %s" % (sT[1], sT[1], sT[2]))
        g.salu("s_add_u32 %s, %s, %s" % (sT[1], sT[1], sT[0]))
        for fi in range(2):
            g.buf_st(vrng(vACC + 4 * (3 * fi + j), 4), vr(vSt), sWS, sT[1], imm=fi * 2048, flags=fl)
    g.salu("s_cmp_lg_u32 %s, 0" % sCG)
    g.raw("    s_cbranch_scc1 L_zst_skip")
    g.begin_opt()
    g.valu("v_lshlrev_b32", vr(vT[0]), ["4", vr(vG4)])
    g.salu("s_lshl_b32 %s, %s, 7" % (sT[0], sFH))
    g.salu("s_add_u32 %s, %s, %s" % (sT[0], sT[0], sZSo))
    g.salu("s_mov_b32 exec_lo, 0x00010001")
    g.salu("s_mov_b32 exec_hi, 0x00010001")
    for fi in range(2):
        g.buf_st(vrng(vACC + 24 + 4 * fi, 4), vr(vT[0]), sWS, sT[0], imm=fi * 64, flags=fl)
    g.salu("s_mov_b64 exec, -1")
    g.end_opt("L_zst_skip")

def phase_b(g, sc1, q_loaded_early):
    fl = "sc1" if sc1 else ""
    dests = [vW, vKT, vKT + 64]
    g.salu("s_mul_i32 %s, %s, %d" % (sT[0], sHead, 8 * REC))
    g.salu("s_mul_i32 %s, %s, %d" % (sT[1], sWave, 3 * 2048))
    g.salu("s_add_u32 %s, %s, %s" % (sT[0], sT[0], sT[1]))
    for i in range(3):
        g.salu("s_add_u32 %s, %s, %d" % (sT[1], sT[0], i * 2048))
        for s in range(8):
            if s > 0:
                g.salu("s_add_u32 %s, %s, %d" % (sT[1], sT[1], REC))
            for p in range(2):
                g.buf_ld(vrng(dests[i] + (2 * s + p) * 4, 4), vr(vL16), sWS, sT[1], imm=p * 1024, flags=fl, nregs=4)
    g.valu("v_lshlrev_b32", vr(vT[0]), ["2", vr(vLane)])
    g.salu("s_lshl_b32 %s, %s, 11" % (sT[1], sHead))
    g.salu("s_add_u32 %s, %s, %d" % (sT[1], sT[1], ZBASE))
    for s in range(8):
        if s > 0:
            g.salu("s_add_u32 %s, %s, 256" % (sT[1], sT[1]))
        g.buf_ld(vr(vX[s]), vr(vT[0]), sWS, sT[1], imm=0, flags=fl)
    g.waitcnt(vm=0)
    acc = [vT[4], vT[5], vT[6], vT[7]]
    for i in range(3):
        base = dests[i]
        for p in range(2):
            for c4 in range(4):
                g.valu("v_add_f32", vr(acc[c4]), [vr(base + 0 * 8 + p * 4 + c4), vr(base + 1 * 8 + p * 4 + c4)])
                for s in range(2, 8):
                    g.valu("v_add_f32", vr(acc[c4]), [vr(acc[c4]), vr(base + s * 8 + p * 4 + c4)])
            g.valu("v_cvt_pk_bf16_f32", vr(vT[8] + 2 * p), [vr(acc[0]), vr(acc[1])])
            g.valu("v_cvt_pk_bf16_f32", vr(vT[8] + 2 * p + 1), [vr(acc[2]), vr(acc[3])])
        g.ds_wr("ds_write_b128", vr(vL16), vrng(vT[8], 4), imm=KVF + (0) )
    raise Err("phase_b placeholder reached")

def phase_b2(g, sc1):
    fl = "sc1" if sc1 else ""
    dests = [vW, vKT, vKT + 64]
    g.salu("s_mul_i32 %s, %s, %d" % (sT[0], sHead, 8 * REC))
    g.salu("s_mul_i32 %s, %s, %d" % (sT[1], sWave, 3 * 2048))
    g.salu("s_add_u32 %s, %s, %s" % (sT[0], sT[0], sT[1]))
    for i in range(3):
        g.salu("s_add_u32 %s, %s, %d" % (sT[1], sT[0], i * 2048))
        for s in range(8):
            if s > 0:
                g.salu("s_add_u32 %s, %s, %d" % (sT[1], sT[1], REC))
            for p in range(2):
                g.buf_ld(vrng(dests[i] + (2 * s + p) * 4, 4), vr(vL16), sWS, sT[1], imm=p * 1024, flags=fl, nregs=4)
    g.valu("v_lshlrev_b32", vr(vT[0]), ["2", vr(vLane)])
    g.salu("s_lshl_b32 %s, %s, 11" % (sT[1], sHead))
    g.salu("s_add_u32 %s, %s, %d" % (sT[1], sT[1], ZBASE))
    for s in range(8):
        if s > 0:
            g.salu("s_add_u32 %s, %s, 256" % (sT[1], sT[1]))
        g.buf_ld(vr(vX[s]), vr(vT[0]), sWS, sT[1], imm=0, flags=fl)
    g.salu("s_mul_i32 %s, %s, 3072" % (sT[2], sWave))
    g.salu("s_add_u32 %s, %s, %d" % (sT[2], sT[2], KVF))
    vkw = vT[9]
    g.valu("v_add_u32", vr(vkw), [sT[2], vr(vL16)])
    g.waitcnt(vm=0)
    acc = [vT[0], vT[1], vT[2], vT[3]]
    pk = vT[4]
    for i in range(3):
        base = dests[i]
        for p in range(2):
            for c4 in range(4):
                r0 = base + p * 4 + c4
                g.valu("v_add_f32", vr(acc[c4]), [vr(r0), vr(r0 + 8)])
                for s in range(2, 8):
                    g.valu("v_add_f32", vr(acc[c4]), [vr(acc[c4]), vr(base + s * 8 + p * 4 + c4)])
            g.valu("v_cvt_pk_bf16_f32", vr(pk + 2 * p), [vr(acc[0]), vr(acc[1])])
            g.valu("v_cvt_pk_bf16_f32", vr(pk + 2 * p + 1), [vr(acc[2]), vr(acc[3])])
        g.ds_wr("ds_write_b128", vr(vkw), vrng(pk, 4), imm=i * 1024)
    g.valu("v_add_f32", vr(vX[0]), [vr(vX[0]), vr(vX[1])])
    for s in range(2, 8):
        g.valu("v_add_f32", vr(vX[0]), [vr(vX[0]), vr(vX[s])])
    g.valu("v_cvt_pk_bf16_f32", vr(vX[0]), [vr(vX[0]), vr(vX[0])])
    g.valu("v_lshlrev_b32", vr(vX[1]), ["1", vr(vLane)])
    g.valu("v_add_u32", vr(vX[1]), ["%d" % ZB, vr(vX[1])])
    g.ds_wr("ds_write_b16", vr(vX[1]), vr(vX[0]), imm=0)
    g.waitcnt(lg=0)
    g.barrier()
    zr = vW
    for fb in range(2):
        for a_ in range(4):
            g.ds_rd("ds_read_b64", vrng(zr + 8 * fb + 2 * a_, 2), vr(vZrd), imm=64 * fb + 16 * a_)
    den = vX[0]
    g.valu("v_mov_b32", vr(den), ["0"])
    g.waitcnt(lg=0)
    for k in range(16):
        g.emit("v_dot2c_f32_bf16 %s, %s, %s" % (vr(den), vr(vPHQ + k), vr(zr + k)), 'valu',
               vw=[den], vr=[den, vPHQ + k, zr + k], dot=True)
    a, b2 = vX[1], vX[2]
    g.valu("v_mov_b32", vr(a), [vr(den)])
    g.valu("v_mov_b32", vr(b2), [vr(den)])
    g.permlane32(vr(a), vr(b2))
    g.valu("v_add_f32", vr(a), [vr(a), vr(b2)])
    g.valu("v_cvt_pk_bf16_f32", vr(b2), [vr(a), vr(a)])
    g.valu("v_lshlrev_b32", vr(b2), ["16", vr(b2)])
    g.valu("v_add_f32", vr(b2), [sEps, vr(b2)])
    g.valu("v_cvt_pk_bf16_f32", vr(a), [vr(b2), vr(b2)])
    vden = vX[3]
    g.valu("v_lshlrev_b32", vr(vden), ["16", vr(a)])
    vrcp = vX[4]
    g.valu("v_rcp_f32", vr(vrcp), [vr(vden)], trans=True)
    g.valu("v_fma_f32", vr(a), ["-" + vr(vden), vr(vrcp), "1.0"])
    g.valu("v_fma_f32", vr(vrcp), [vr(a), vr(vrcp), vr(vrcp)])
    acc = vW + 32
    fragA = [vW + 16, vW + 48]
    g.salu("s_mul_i32 %s, %s, %d" % (sT[0], sWave, 32 * ROWB))
    g.salu("s_add_u32 %s, %s, %s" % (sT[0], sT[0], sQbase))
    g.salu("s_mov_b32 %s, %d" % (sT[1], ROWB))
    vO = vX[5]
    g.valu("v_lshlrev_b32", vr(vO), ["4", vr(vB32)])
    g.valu("v_mad_u32_u24", vr(vO), [sT[1], vr(vR32), vr(vO)])
    t0, t1, t2, t3 = vX[6], vX[7], vX[8], vX[9]
    pko = [vX[10], vX[11], vX[12], vX[13]]
    for dblk in range(6):
        buf = fragA[dblk & 1]
        for tt in range(4):
            g.ds_rd("ds_read_b128", vrng(buf + 4 * tt, 4), vr(vL16), imm=KVF + (dblk * 4 + tt) * 1024)
        for i in range(16):
            g.valu("v_mov_b32", vr(acc + i), ["0"])
        g.waitcnt(lg=0)
        for tt in range(4):
            g.mfma('32x32x16', vrng(acc, 16), vrng(buf + 4 * tt, 4), vrng(vPHQ + 4 * tt, 4))
        for half in range(2):
            for pair in range(4):
                ra = acc + 8 * half + 2 * pair
                g.valu("v_cvt_pk_bf16_f32", vr(t0), [vr(ra), vr(ra + 1)])
                g.valu("v_lshlrev_b32", vr(t1), ["16", vr(t0)])
                g.valu("v_and_b32", vr(t0), ["0xffff0000", vr(t0)])
                g.valu("v_mul_f32", vr(t2), [vr(t1), vr(vrcp)])
                g.valu("v_mul_f32", vr(t3), [vr(t0), vr(vrcp)])
                g.valu("v_fma_f32", vr(vT[0]), ["-" + vr(t2), vr(vden), vr(t1)])
                g.valu("v_fma_f32", vr(vT[1]), ["-" + vr(t3), vr(vden), vr(t0)])
                g.valu("v_fma_f32", vr(t2), [vr(vT[0]), vr(vrcp), vr(t2)])
                g.valu("v_fma_f32", vr(t3), [vr(vT[1]), vr(vrcp), vr(t3)])
                g.valu("v_cvt_pk_bf16_f32", vr(pko[pair]), [vr(t2), vr(t3)])
            g.permlane32(vr(pko[0]), vr(pko[2]))
            g.permlane32(vr(pko[1]), vr(pko[3]))
            g.buf_st(vrng(pko[0], 4), vr(vO), sOUT, sT[0], imm=64 * dblk + 32 * half)

def footer(names, lds):
    out = ["L_exit:", "    s_endpgm", '.section .rodata,"a"']
    for name in names:
        out += [".p2align 6", ".amdhsa_kernel %s" % name,
                "  .amdhsa_next_free_vgpr 256", "  .amdhsa_next_free_sgpr %d" % NEXT_SGPR,
                "  .amdhsa_accum_offset 256", "  .amdhsa_group_segment_fixed_size 0",
                "  .amdhsa_kernarg_size 56", "  .amdhsa_user_sgpr_count 2",
                "  .amdhsa_user_sgpr_kernarg_segment_ptr 1", "  .amdhsa_system_sgpr_workgroup_id_x 1",
                "  .amdhsa_float_denorm_mode_32 3", "  .amdhsa_float_denorm_mode_16_64 3",
                ".end_amdhsa_kernel"]
    return out

HEADER = """; rfa linear feature attention, bf16 MFMA kernel (generated by work/gen.py)
"""

def kernel_head(label):
    return [".p2align 8", ".globl %s" % label, ".type %s,@function" % label, "%s:" % label]

def build_fused():
    g = Gen()
    L = "standalone__linear_kernel_rfa__prompt_kernel"
    g.raw(HEADER + "; @launch grid=(256,1,1) block=(512,1,1) lds=%d" % LDS_TOTAL)
    g.raw('.amdgcn_target "amdgcn-amd-amdhsa--gfx950"')
    g.raw(".text")
    for s in kernel_head(L): g.raw(s)
    prologue(g, 'fused')
    g.label("L_A")
    g.salu("s_cmp_lg_u32 %s, 0" % sMode)
    g.raw("    s_cbranch_scc1 L_A_noom")
    g.begin_opt()
    issue_omega_dma(g)
    g.end_opt("L_A_noom")
    g.salu("s_mul_i32 %s, %s, %d" % (sT[0], sHead, SEQ * ROWB))
    g.salu("s_mul_i32 %s, %s, %d" % (sT[1], sCur, 256 * ROWB))
    g.salu("s_add_u32 %s, %s, %s" % (sKVbase, sT[0], sT[1]))
    issue_k_loads(g)
    issue_v_dma(g)
    g.salu("s_cmp_lg_u32 %s, 0" % sMode)
    g.raw("    s_cbranch_scc1 L_A_noq")
    g.begin_opt()
    issue_q_loads(g)
    g.end_opt("L_A_noq")
    g.salu("s_cmp_eq_u32 %s, 0" % sMode)
    g.raw("    s_cbranch_scc1 L_A_norm")
    g.begin_opt()
    g.waitcnt(vm=0)
    g.end_opt("L_A_norm")
    g.waitcnt(vm=36)
    g.barrier()
    g.waitcnt(vm=24)
    phi_to_regs(g, vKT, is_q=False)
    g.waitcnt(vm=12, lg=0)
    g.barrier()
    kv_phase(g)
    partial_stores(g, sc1=True)
    g.waitcnt(vm=0, lg=0)
    g.barrier()
    g.salu("s_cmp_lg_u32 %s, 0" % sMode)
    g.raw("    s_cbranch_scc1 L_FB_NEXT")
    g.begin_opt()
    g.salu("s_cmp_lg_u32 %s, 0" % sWave)
    g.raw("    s_cbranch_scc1 L_nopub")
    g.begin_opt()
    g.salu("s_lshl_b32 %s, %s, 2" % (sT[0], sHead))
    g.valu("v_mov_b32", vr(vT[0]), ["1"])
    g.salu("s_mov_b32 exec_lo, 1")
    g.salu("s_mov_b32 exec_hi, 0")
    g.emit("buffer_atomic_add %s, %s, %s, %s offen sc1" % (vr(vT[0]), vr(vZero), sDBG, sT[0]), 'vmem_st',
           vr=[vT[0], vZero], sgpr_r={sDBG, sT[0]})
    g.salu("s_mov_b64 exec, -1")
    g.end_opt("L_nopub")
    g.salu("s_mov_b32 %s, 1" % sQdone)
    phi_to_regs(g, vQT, is_q=True)
    g.end_opt("L_AFTER_PUB")
    g.label("L_AFTER_PUB2")
    g.salu("s_cmp_lg_u32 %s, 0" % sMode)
    g.raw("    s_cbranch_scc1 L_B")
    g.begin_opt()
    g.salu("s_cmp_lg_u32 %s, 0" % sWave)
    g.raw("    s_cbranch_scc1 L_POLL_JOIN")
    g.begin_opt()
    g.salu("s_lshl_b32 %s, %s, 2" % (sT[0], sHead))
    g.salu("s_mov_b32 %s, 0" % sPollCnt)
    g.label("L_POLL")
    g.buf_ld(vr(vT[0]), vr(vZero), sDBG, sT[0], flags="sc1")
    g.waitcnt(vm=0)
    g.readfirstlane(sPollVal, vr(vT[0]))
    g.salu("s_cmp_ge_u32 %s, 8" % sPollVal)
    g.raw("    s_cbranch_scc1 L_POLL_DONE")
    g.salu("s_sleep 4")
    g.salu("s_add_u32 %s, %s, 1" % (sPollCnt, sPollCnt))
    g.salu("s_cmp_lt_u32 %s, 4096" % sPollCnt)
    g.raw("    s_cbranch_scc1 L_POLL")
    g.salu("s_mov_b32 %s, 1" % sMode)
    g.label("L_POLL_DONE")
    g.valu("v_mov_b32", vr(vT[0]), [sMode])
    g.valu("v_mov_b32", vr(vT[1]), ["%d" % FLG])
    g.ds_wr("ds_write_b32", vr(vT[1]), vr(vT[0]))
    g.waitcnt(lg=0)
    g.end_opt("L_POLL_JOIN")
    g.barrier()
    g.valu("v_mov_b32", vr(vT[1]), ["%d" % FLG])
    g.ds_rd("ds_read_b32", vr(vT[0]), vr(vT[1]))
    g.waitcnt(lg=0)
    g.readfirstlane(sMode, vr(vT[0]))
    g.salu("s_cmp_lg_u32 %s, 0" % sMode)
    g.raw("    s_cbranch_scc1 L_FB_NEXT")
    g.end_opt("L_GO_B")
    g.label("L_B")
    phase_b2(g, sc1=True)
    g.waitcnt(vm=0)
    g.raw("    s_branch L_exit")
    g.label("L_FB_NEXT")
    g.salu("s_add_u32 %s, %s, 1" % (sCur, sCur))
    g.salu("s_and_b32 %s, %s, 7" % (sCur, sCur))
    g.salu("s_add_u32 %s, %s, 1" % (sIter, sIter))
    g.salu("s_cmp_lt_u32 %s, 8" % sIter)
    g.raw("    s_cbranch_scc1 L_A")
    g.raw("    s_branch L_AFTER_PUB2")
    for s in footer([L], LDS_TOTAL): g.raw(s)
    return g.text()

def build_two():
    g = Gen()
    L1 = "rfa_partial_kernel"
    L2 = "rfa_output_kernel"
    g.raw(HEADER)
    g.raw("; @launch kernel=%s grid=(256,1,1) block=(512,1,1) lds=%d" % (L1, LDS_TOTAL))
    g.raw("; @launch kernel=%s grid=(256,1,1) block=(512,1,1) lds=%d" % (L2, LDS_K2 + 256))
    g.raw('.amdgcn_target "amdgcn-amd-amdhsa--gfx950"')
    g.raw(".text")
    for s in kernel_head(L1): g.raw(s)
    prologue(g, 'k1')
    issue_omega_dma(g)
    issue_k_loads(g)
    issue_v_dma(g)
    g.waitcnt(vm=24)
    g.barrier()
    g.waitcnt(vm=12)
    phi_to_regs(g, vKT, is_q=False)
    g.waitcnt(vm=0, lg=0)
    g.barrier()
    kv_phase(g)
    partial_stores(g, sc1=False)
    g.raw("    s_endpgm")
    g.hist = []; g.pend_vm = []; g.pend_lg = []
    for s in kernel_head(L2): g.raw(s)
    prologue(g, 'k2')
    issue_omega_dma(g)
    issue_q_loads(g)
    g.waitcnt(vm=12)
    g.barrier()
    g.waitcnt(vm=0)
    phi_to_regs(g, vQT, is_q=True)
    phase_b2(g, sc1=False)
    for s in footer([L1, L2], 0): g.raw(s)
    return g.text()

if __name__ == "__main__":
    txt = build_fused() if FUSED else build_two()
    with open("standalone__linear_kernel_rfa__prompt.s", "w") as f:
        f.write(txt)
    print("written, %d lines" % txt.count("\n"))
```
